```python
import torch

def _softmax(x, axis=-1):
    return torch.softmax(x, dim=axis)

def _gelu(x):
    return torch.nn.functional.gelu(x, approximate='tanh')

def _silu(x):
    return torch.nn.functional.silu(x)

def _sigmoid(x):
    return torch.sigmoid(x)

def _layernorm(x, axis=-1, eps=1e-05):
    m = x.mean(dim=axis, keepdim=True)
    v = x.var(dim=axis, keepdim=True, unbiased=False)
    return (x - m) / torch.sqrt(v + eps)

def _scatter_add(tgt, idx, src, axis=0):
    return tgt.clone().index_add_(axis, idx, src)

def _segment_sum(src, seg, n):
    out = torch.zeros((n,) + src.shape[1:], dtype=src.dtype)
    return out.index_add_(0, seg, src)

def _pad(x, pw):
    flat = tuple((v for pair in reversed(pw) for v in pair))
    return torch.nn.functional.pad(x, flat)
kernel_name = 'adaLN_cond__mha_block_cached__glu_gated_geglu__prompt'

def setup_inputs():

    _w = lambda a: (lambda t: t.to(torch.bfloat16) if t.is_floating_point() else t)(torch.as_tensor(a))

    def _A_setup():
        B, Sq, D = (1, 2048, 448)
        H, Sk, Dh = (16, 2048, 256)
        return {'x': _w((lambda *s: torch.randn(*s, dtype=torch.bfloat16) * 0.05)(B, Sq, D)), 'k_cache': _w((lambda *s: torch.randn(*s, dtype=torch.bfloat16) * 0.8)(B, H, Sk, Dh)), 'v_cache': _w((lambda *s: torch.randn(*s, dtype=torch.bfloat16) * 3.2)(B, H, Sk, Dh)), 'wq': _w((lambda *s: torch.randn(*s, dtype=torch.bfloat16) * 0.8)(D, H * Dh) * D ** (-0.5)), 'wo': _w((lambda *s: torch.randn(*s, dtype=torch.bfloat16) * 3.2)(H * Dh, D) * (H * Dh) ** (-0.5))}
    _A_in = _A_setup()

    def _B_setup():
        B, S, Dm, Df = (1, 2048, 448, 1792)
        return {'x': _w((lambda *s: torch.randn(*s, dtype=torch.bfloat16) * 0.05)(B, S, Dm)), 'w_gate': _w((lambda *s: torch.randn(*s, dtype=torch.bfloat16) * 3.2)(Dm, Df) * Dm ** (-0.5)), 'w_up': _w((lambda *s: torch.randn(*s, dtype=torch.bfloat16) * 3.2)(Dm, Df) * Dm ** (-0.5)), 'w_down': _w((lambda *s: torch.randn(*s, dtype=torch.bfloat16) * 3.2)(Df, Dm) * Df ** (-0.5))}
    _B_in = _B_setup()
    return {'A_x': _A_in['x'], 'A_k_cache': _A_in['k_cache'], 'A_v_cache': _A_in['v_cache'], 'A_wq': _A_in['wq'], 'A_wo': _A_in['wo'], 'B_x': _B_in['x'], 'B_w_gate': _B_in['w_gate'], 'B_w_up': _B_in['w_up'], 'B_w_down': _B_in['w_down'], 'c': _w((lambda *s: torch.randn(*s, dtype=torch.bfloat16) * 0.4)(1, 448) * 8.0), 'w_mod': _w((lambda *s: torch.randn(*s, dtype=torch.bfloat16) * 0.4)(448, 6 * 448) * 448 ** (-0.5) * 8.0)}

def reference(A_x, A_k_cache, A_v_cache, A_wq, A_wo, B_x, B_w_gate, B_w_up, B_w_down, c, w_mod):

    def _A_ref(x, k_cache, v_cache, wq, wo):
        B, Sq, D = x.shape
        H, Dh = (16, 256)
        q = (lambda x, *d: x.permute(*d))((x @ wq).reshape(B, Sq, H, Dh), 0, 2, 1, 3)
        scores = torch.einsum('bhqd,bhkd->bhqk', q, k_cache) * Dh ** (-0.5)
        p = _softmax(scores, axis=-1)
        o = torch.einsum('bhqk,bhkd->bhqd', p, v_cache)
        return (lambda x, *d: x.permute(*d))(o, 0, 2, 1, 3).reshape(B, Sq, H * Dh) @ wo

    def _B_ref(x, w_gate, w_up, w_down):
        g = torch.einsum('bsd,df->bsf', x, w_gate)
        u = torch.einsum('bsd,df->bsf', x, w_up)
        h = _gelu(g) * u
        return torch.einsum('bsf,fd->bsd', h, w_down)
    x = A_x
    mod = (_silu(c) @ w_mod).reshape(c.shape[0], 6, 1, -1)
    sa, ca, ga, sb, cb, gb = (mod[:, 0].clone(), mod[:, 1].clone(), mod[:, 2].clone(), mod[:, 3].clone(), mod[:, 4].clone(), mod[:, 5].clone())
    h = _layernorm(x, axis=-1) * (1 + ca) + sa
    x = x + ga * _A_ref(h, A_k_cache, A_v_cache, A_wq, A_wo)
    h = _layernorm(x, axis=-1) * (1 + cb) + sb
    x = x + gb * _B_ref(h, B_w_gate, B_w_up, B_w_down)
    return x
```

```python
import re

REG_RE = re.compile(r'\b([vas])(\d+)\b|\b([vas])\[(\d+):(\d+)\]')

def regs_of(tok):
    out = []
    for m in REG_RE.finditer(tok):
        if m.group(1):
            out.append((m.group(1), int(m.group(2))))
        else:
            out += [(m.group(3), i) for i in range(int(m.group(4)), int(m.group(5)) + 1)]
    for w in ('vcc', 'exec', 'm0', 'scc'):
        if re.search(r'\b' + w + r'\b', tok):
            out.append((w, 0))
    return out

TRANS = ('v_exp_f32', 'v_log_f32', 'v_rcp_f32', 'v_rsq_f32', 'v_sqrt_f32', 'v_sin_f32', 'v_cos_f32')

class Ins:
    __slots__ = ('text', 'op', 'kind', 'defs', 'uses', 'srcc', 'tag', 'ab')
    def __init__(self, text, tag=None):
        self.text = text.strip()
        self.tag = tag
        t = self.text.split(';')[0].strip()
        self.srcc = []
        self.ab = []
        if t.endswith(':') or t.startswith('.') or not t:
            self.op = t; self.kind = 'label'; self.defs = []; self.uses = []
            return
        parts = t.split(None, 1)
        op = parts[0]; self.op = op
        ops = [x.strip() for x in parts[1].split(',')] if len(parts) > 1 else []
        R = [regs_of(x) for x in ops]
        flat = lambda l: [r for x in l for r in x]
        if op.startswith('v_mfma'):
            self.kind = 'mfma'; self.defs = R[0]; self.uses = flat(R[1:]); self.srcc = R[3]; self.ab = R[1] + R[2]
        elif op.startswith('ds_read') or op.startswith('ds_bpermute') or op.startswith('ds_swizzle'):
            self.kind = 'ds_read'; self.defs = R[0]; self.uses = flat(R[1:])
        elif op.startswith('ds_write') or op in ('ds_max_u32','ds_or_b32','ds_add_u32','ds_max_f32'):
            self.kind = 'ds_write'; self.defs = []; self.uses = flat(R)
        elif op.startswith('buffer_load') or op.startswith('global_load'):
            if re.search(r'\blds\b', t) or 'load_lds' in op:
                self.kind = 'dma'; self.defs = []; self.uses = flat(R) + [('m0', 0)]
            else:
                self.kind = 'vload'; self.defs = R[0]; self.uses = flat(R[1:])
        elif op.startswith('buffer_store') or op.startswith('global_store') or op.startswith('buffer_atomic') or op.startswith('global_atomic'):
            self.kind = 'vstore'; self.defs = []; self.uses = flat(R)
        elif op.startswith('s_load') or op in ('s_memtime', 's_memrealtime'):
            self.kind = 'smem'; self.defs = R[0]; self.uses = flat(R[1:])
        elif op == 's_waitcnt':
            self.kind = 'wait'; self.defs = []; self.uses = []
        elif op == 's_nop':
            self.kind = 'nop'; self.defs = []; self.uses = []
        elif op == 's_barrier':
            self.kind = 'barrier'; self.defs = []; self.uses = []
        elif op.startswith('s_cbranch') or op in ('s_branch', 's_endpgm', 's_setprio', 's_sleep'):
            self.kind = 'branch'; self.defs = []; self.uses = []
        elif op.startswith('s_cmp'):
            self.kind = 'salu'; self.defs = [('scc', 0)]; self.uses = flat(R)
        elif op.startswith('s_'):
            self.kind = 'salu'; self.defs = R[0]; self.uses = flat(R[1:])
            if 'saveexec' in op: self.defs = self.defs + [('exec', 0)]
        elif op.startswith('v_'):
            self.kind = 'trans' if op.replace('_e32', '').replace('_e64', '') in TRANS else 'valu'
            self.defs = R[0]; self.uses = flat(R[1:])
            if op.startswith('v_fmac') or op.startswith('v_permlane') or op.startswith('v_dot2c') or 'dpp' in op or 'row_' in t or 'quad_perm' in t:
                self.uses = self.uses + R[0]
            if op.startswith('v_permlane') and 'swap' in op:
                self.defs = R[0] + R[1]
            if '_co_' in op:
                self.defs = R[0] + R[1]
        else:
            raise ValueError("unknown op " + t)
    def states(self):
        if self.kind == 'label': return 0
        if self.kind == 'nop': return int(self.text.split()[1], 0) + 1
        return 1
    def passes(self):
        return 4 if '16x16x32' in self.op or '16x16x16' in self.op else 8

class Asm:
    def __init__(self):
        self.L = []
    def __call__(self, text, tag=None):
        for line in text.split('\n'):
            if line.strip():
                self.L.append(Ins(line, tag))
    def text(self):
        return '\n'.join((i.text if i.kind == 'label' else '  ' + i.text) for i in self.L) + '\n'

def isvalu(i): return i.kind in ('valu', 'trans')

def need_states(p, c):
    n = 0
    pd = set(p.defs); cu = set(c.uses); cd = set(c.defs)
    vg = lambda s: {r for r in s if r[0] in 'va'}
    sg = lambda s: {r for r in s if r[0] == 's' or r[0] == 'vcc'}
    if isvalu(p):
        if c.kind == 'mfma' and vg(pd) & cu: n = max(n, 2)
        if p.kind == 'trans' and c.kind == 'valu' and vg(pd) & cu: n = max(n, 1)
        if p.kind == 'trans' and c.kind == 'trans' and vg(pd) & cu: n = max(n, 1)
        if c.op.startswith('v_permlane') and vg(pd) & cu: n = max(n, 2)
        if isvalu(c) and ('dpp' in c.op or 'row_' in c.text or 'quad_perm' in c.text) and vg(pd) & cu: n = max(n, 2)
        if c.op.startswith('v_readfirstlane') or c.op.startswith('v_readlane'):
            if vg(pd) & cu: n = max(n, 1)
            if sg(pd) & cu: n = max(n, 4)
        if sg(pd) & cu:
            if c.kind in ('vload', 'vstore', 'dma'): n = max(n, 5)
            if isvalu(c): n = max(n, 2)
            if c.kind == 'salu': n = max(n, 1)
        if ('vcc', 0) in pd and c.op.startswith('s_cbranch_vcc'): n = max(n, 1)
        if ('exec', 0) in pd and c.kind == 'mfma': n = max(n, 4)
        if 'sdwa' in p.op or 'op_sel' in p.text and 'fma_mix' not in p.op:
            if isvalu(c) and vg(pd) & (cu | cd): n = max(n, 1)
    if p.op.startswith('v_dot'):
        if c.op == p.op and vg(pd) & cu:
            ops = c.text.split(None, 1)[1].split(',')
            ab = set(regs_of(ops[1]) + regs_of(ops[2]))
            if pd & ab: n = max(n, 3)
        elif c.kind != 'label' and vg(pd) & (cu | cd): n = max(n, 3)
    if p.kind == 'salu' and ('m0', 0) in pd and c.kind == 'dma': n = max(n, 1)
    if p.kind == 'mfma':
        ps = p.passes()
        big = {4: 8, 8: 12}[ps]
        if c.kind == 'mfma':
            if pd & set(c.ab): n = max(n, big)
            if pd & set(c.srcc):
                if list(p.defs) == list(c.srcc) and p.passes() == c.passes(): pass
                else: n = max(n, {4: 6, 8: 10}[ps])
            elif pd & cd: n = max(n, big)
        elif c.kind in ('valu', 'trans', 'vload', 'vstore', 'ds_read', 'ds_write', 'dma'):
            if pd & (cu | cd): n = max(n, big)
        if (isvalu(c)) and set(p.srcc) & cd: n = max(n, {4: 3, 8: 7}[ps])
    if p.kind == 'vstore' and ('x4' in p.op or 'x3' in p.op):
        if vg(set(p.uses)) & cd: n = max(n, 2 if isvalu(c) else 1)
    return n

def check_hazards(seq, name='', fix=False):
    probs = []
    W = 14
    for j, c in enumerate(seq):
        if c.kind == 'label': continue
        dist = 0
        for i in range(j - 1, max(-1, j - 40), -1):
            p = seq[i]
            if p.kind != 'label':
                n = need_states(p, c)
                if n > dist:
                    probs.append((j, n - dist, f"{name}: need {n} have {dist}: [{p.text}] -> [{c.text}]"))
            dist += p.states()
            if dist >= W: break
    return probs

def check_counters(seq, name=''):
    probs = []
    lg = []
    vm = []
    for c in seq:
        if c.kind == 'label': continue
        if c.kind == 'wait':
            m = re.search(r'lgkmcnt\((\d+)\)', c.text)
            if m:
                n = int(m.group(1))
                if any(x.kind == 'smem' for x in lg) and n > 0:
                    pass
                else:
                    lg = lg[max(0, len(lg) - n):] if n > 0 else []
            m = re.search(r'vmcnt\((\d+)\)', c.text)
            if m:
                n = int(m.group(1))
                vm = vm[max(0, len(vm) - n):] if n > 0 else []
            continue
        touched = set(c.uses) | set(c.defs)
        for q, nm in ((lg, 'lgkm'), (vm, 'vm')):
            for x in q:
                if set(x.defs) & touched:
                    probs.append(f"{name}: {nm} pending [{x.text}] touched by [{c.text}]")
        if c.kind in ('ds_read', 'ds_write', 'smem'): lg.append(c)
        if c.kind in ('vload', 'vstore', 'dma'): vm.append(c)
    return probs


def fix_hazards(L):
    out = []
    for c in L:
        if c.kind != 'label':
            dist = 0; need = 0
            for i in range(len(out) - 1, max(-1, len(out) - 40), -1):
                p = out[i]
                if p.kind != 'label':
                    n = need_states(p, c)
                    if n > dist: need = max(need, n - dist)
                dist += p.states()
                if dist >= 20: break
            if need:
                out.append(Ins(f"s_nop {need-1}", 'autonop'))
        out.append(c)
    return out

def auto_waits(L):
    out = []
    lg = []; vm = []
    def apply(text):
        nonlocal lg, vm
        m = re.search(r'lgkmcnt\((\d+)\)', text)
        if m:
            n = int(m.group(1))
            if n == 0: lg = []
            elif not any(x.kind == 'smem' for x in lg): lg = lg[max(0, len(lg) - n):]
        m = re.search(r'vmcnt\((\d+)\)', text)
        if m:
            n = int(m.group(1)); vm = vm[max(0, len(vm) - n):] if n > 0 else []
    for c in L:
        if c.kind == 'label':
            out.append(c); continue
        if c.kind == 'wait':
            t = c.text
            m = re.search(r'vmcnt\(@(\w+)\)', t)
            if m:
                idx = [i for i, x in enumerate(vm) if x.tag == m.group(1)]
                n = len(vm) - 1 - idx[-1] if idx else None
                if n is None:
                    t = re.sub(r'vmcnt\(@\w+\)', '', t).strip()
                    if t == 's_waitcnt': continue
                else:
                    t = re.sub(r'vmcnt\(@\w+\)', f'vmcnt({min(n,63)})', t)
                c = Ins(t, c.tag)
            apply(c.text); out.append(c); continue
        touched = set(c.uses) | set(c.defs)
        w = []
        il = [i for i, x in enumerate(lg) if set(x.defs) & touched]
        if il:
            n = 0 if any(x.kind == 'smem' for x in lg) else min(15, len(lg) - 1 - il[-1])
            w.append(f'lgkmcnt({n})')
        iv = [i for i, x in enumerate(vm) if set(x.defs) & touched]
        if iv:
            w.insert(0, f'vmcnt({min(63, len(vm) - 1 - iv[-1])})')
        if w:
            t = 's_waitcnt ' + ' '.join(w)
            apply(t); out.append(Ins(t, 'autowait'))
        out.append(c)
        if c.kind in ('ds_read', 'ds_write', 'smem'): lg.append(c)
        if c.kind in ('vload', 'vstore', 'dma'): vm.append(c)
    return out

def finalize(a):
    a.L = auto_waits(a.L)
    a.L = fix_hazards(a.L)
    return a

class Op:
    def __init__(self, text, cost=1, lo=0, hi=10**9, tag=None, after=None, gapdist=0):
        self.text = text; self.cost = cost; self.lo = lo; self.hi = hi; self.tag = tag
        self.after = after or []; self.gapdist = gapdist; self.gap = None

def schedule(nm, streams, budget=2, bud=None):
    gaps = [[] for _ in range(nm)]
    pos = [0] * len(streams)
    for g in range(nm):
        b = budget if bud is None else bud(g)
        while True:
            best = None
            for si, st in enumerate(streams):
                if pos[si] >= len(st): continue
                o = st[pos[si]]
                if o.lo > g: continue
                if any(a.gap is None or a.gap + o.gapdist > g for a in o.after): continue
                if o.cost > b and o.hi > g: continue
                if best is None or o.hi < streams[best][pos[best]].hi: best = si
            if best is None: break
            o = streams[best][pos[best]]
            if b <= 0 and o.hi > g: break
            o.gap = g; gaps[g].append(o); pos[best] += 1; b -= o.cost
    left = [o for si, st in enumerate(streams) for o in st[pos[si]:]]
    for o in left:
        o.gap = nm - 1; gaps[nm - 1].append(o)
    return gaps, left

def emit_phase(a, mf, gaps):
    for m, g in zip(mf, gaps):
        a(m)
        for o in g:
            a(o.text, o.tag)

def kernel_text(name, a):
    return f".globl {name}\n.p2align 8\n.type {name},@function\n{name}:\n" + a.text()

def kd_text(name, vgpr, acc, sgpr=102):
    return (f".p2align 6\n.amdhsa_kernel {name}\n  .amdhsa_next_free_vgpr {vgpr}\n  .amdhsa_next_free_sgpr {sgpr}\n"
            f"  .amdhsa_accum_offset {acc}\n  .amdhsa_group_segment_fixed_size 0\n  .amdhsa_kernarg_size 112\n"
            f"  .amdhsa_user_sgpr_count 2\n  .amdhsa_user_sgpr_kernarg_segment_ptr 1\n"
            f"  .amdhsa_system_sgpr_workgroup_id_x 1\n.end_amdhsa_kernel\n")
```

```python
from asmlib import *
from layout import *

SLOT = [0, 65536, 32768, 98304]
XB = 131072
KR = 0; VR = 4; KD = 12; VD = 20; WD = 28; PW = 36; PR = 37; LS = 38
WOR = 42
QW = 44; QR = 45; PST = 46; LA = 47
T0 = 48
NEG = 64; PO = 80; S0 = 96; OA = 128
PP = 224
MF = "v_mfma_f32_16x16x32_bf16"

def q4(f, r): return f"{f}[{r}:{r+3}]"
def pool(n, i):
    return 128 + 4 * i if i < 8 else 160 + 32 * (n & 1) + 4 * (i - 8)
def Sreg(sub, g): return S0 + 4 * (sub * 4 + g)
def Oreg(t, g): return OA + 4 * (t * 4 + g)

def ttype(n):
    if n <= 6: return 'W'
    if n == 7: return 'K'
    if n >= 71: return 'O'
    if n == 70: return 'V'
    return 'K' if n % 2 == 0 else 'V'

def spread(ops, lo, hi, slack=2):
    n = len(ops)
    for i, o in enumerate(ops):
        p = lo + (i * (hi - lo)) // max(1, n)
        o.lo = max(o.lo, p); o.hi = max(o.lo, p) + slack
    return ops

def rd_ops(n, base):
    ty = ttype(n); sl = SLOT[n & 3]; hi = sl >= 65536; so = sl & 0xffff
    res = []
    for i in range(16):
        f = pool(n, i); k = i >> 3; t = i & 7
        lo = base + (4 * t + 3 if i < 8 else 0)
        if ty == 'K':
            res.append([Op(f"ds_read_b128 {q4('a', f)}, v{KR+(t&3)} offset:{so + k*8192 + (t>>2)*256}", lo=lo)])
        else:
            o = []
            for h in range(2):
                if ty == 'V': ad = VR + t; imm = so + k * 8192 + h * 4096
                elif ty == 'W': ad = VR + (t >> 1) + (4 if hi else 0); imm = so + k * 8192 + h * 4096 + 8 * (t & 1)
                else: ad = WOR + (1 if hi else 0); imm = so + t * 4096 + h * 2048 + 8 * k
                o.append(Op(f"ds_read_b64_tr_b16 a[{f+2*h}:{f+2*h+1}], v{ad} offset:{imm}", lo=lo))
            res.append(o)
    fl = lambda l: [x for y in l for x in y]
    return fl(res[8:]), fl(res[:8])

def dma_ops(n):
    ty = ttype(n); sl = SLOT[n & 3]
    ad, sr, so = {'W': (WD, 8, 's38'), 'K': (KD, 12, 's34'), 'V': (VD, 16, 's35'), 'O': (WD, 20, 's38')}[ty]
    ops = []
    for j in range(8):
        if j == 0:
            pre = {'W': f"s_mov_b32 s38, {n*64*8192}\n", 'O': f"s_movk_i32 s38, {(n-71)*128}\n"}.get(ty, "")
            ops.append(Op(pre + f"s_add_u32 m0, s33, {sl}", cost=2 if pre else 1))
        if j == 4: ops.append(Op(f"s_add_u32 m0, s33, {sl+4096}"))
        ops.append(Op(f"buffer_load_dwordx4 v{ad+j}, s[{sr}:{sr+3}], {so} offen offset:{1024*(j&3)} lds", cost=2, tag=f"T{n}"))
    if ty in 'KV': ops.append(Op(f"s_add_u32 {so}, {so}, 32768"))
    return ops

def mf_qk(n, acc, c0):
    L = []
    for sub in range(2):
        for s in range(8):
            for g in range(4):
                d = q4('v', acc(sub, g))
                L.append(f"{MF} {d}, {q4('a', pool(n, sub*8+s))}, {q4('a', 4*(s*4+g))}, {c0(g) if s == 0 else d}")
    return L
def mf_pv(n, own, first=False):
    L = []
    for k in range(2):
        for t in range(8):
            for g in range(4):
                d = q4('v', Oreg(t, g))
                b = q4('v', own + 4 * g) if k == 0 else q4('a', PP + 4 * g)
                L.append(f"{MF} {d}, {q4('a', pool(n, k*8+t))}, {b}, {0 if (first and k == 0) else d}")
    return L

def endop(g, vm, bar=True):
    w = f"s_waitcnt vmcnt({vm}) lgkmcnt(0)" if vm is not None else "s_waitcnt lgkmcnt(0)"
    return Op(w + ("\ns_barrier" if bar else ""), cost=2, lo=g, hi=g)

def run(a, mf, streams, name):
    gaps, left = schedule(len(mf), streams)
    pins = set(id(o) for o in streams[-1])
    for g in gaps: g.sort(key=lambda o: id(o) in pins)
    over = sum(max(0, sum(o.cost for o in g) - 2) for g in gaps)
    STATS.append((name, len(left), over))
    emit_phase(a, mf, gaps)
STATS = []

def softmax_ops(base0, base1, cvt_lo):
    ex = []; ad = []; cv = []
    E = {}
    for sub in range(2):
        for g in range(4):
            for r in range(4):
                x = Sreg(sub, g) + r
                e = Op(f"v_exp_f32 v{x}, v{x}", cost=2, lo=(base0, base1)[sub] + g)
                ex.append(e); E[(sub, g, r)] = e
                ad.append(Op(f"v_add_f32 v{LS+g}, v{LS+g}, v{x}", after=[e], gapdist=1))
    for sub in range(2):
        for g in range(4):
            for p in range(2):
                x = Sreg(sub, g) + 2 * p
                cv.append(Op(f"v_cvt_pk_bf16_f32 v{PO+4*g+2*sub+p}, v{x}, v{x+1}", lo=cvt_lo + g,
                             after=[E[(sub, g, 2*p)], E[(sub, g, 2*p+1)]], gapdist=1))
    return ex, ad, cv

def pw_ops(src, off=0): return [Op(f"ds_write_b128 v{PW}, {q4('v', src+4*g)} offset:{off+1024*g}", cost=2) for g in range(4)]
def pr_ops(off=0): return [Op(f"ds_read_b128 {q4('a', PP+4*g)}, v{PR} offset:{off+1024*g}") for g in range(4)]

def xlane(a, op, r, t):
    for sw in ("v_permlane16_swap_b32", "v_permlane32_swap_b32"):
        for g in range(4): a(f"v_mov_b32 v{t+g}, v{r+g}")
        for g in range(4): a(f"{sw} v{r+g}, v{t+g}")
        for g in range(4): a(f"{op} v{r+g}, v{r+g}, v{t+g}")

def set_negm(a, m, t):
    xlane(a, "v_max_f32", m, t)
    a(f"ds_write_b128 v{PW}, {q4('v', m)} offset:16384")
    a("s_waitcnt lgkmcnt(0)")
    a("s_barrier")
    a(f"ds_read_b128 {q4('v', t)}, v{PR} offset:16384")
    for g in range(4): a(f"v_max_f32 v{m+g}, v{m+g}, v{t+g}")
    for g in range(4):
        for r in range(4): a(f"v_sub_f32 v{NEG+4*g+r}, 0, v{m+g}")

def exchange(a):
    for s in range(4):
        for g in range(4):
            x = Oreg(2 * s, g); y = Oreg(2 * s + 1, g)
            a(f"v_cvt_pk_bf16_f32 v{x}, v{x}, v{x+1}"); a(f"v_cvt_pk_bf16_f32 v{x+1}, v{x+2}, v{x+3}")
            a(f"v_cvt_pk_bf16_f32 v{x+2}, v{y}, v{y+1}"); a(f"v_cvt_pk_bf16_f32 v{x+3}, v{y+2}, v{y+3}")
            a(f"ds_write_b128 v{QW}, {q4('v', x)} offset:{(s*4+g)*1024}")
    a("s_waitcnt lgkmcnt(0)")
    a("s_barrier")
    for i in range(32):
        a(f"ds_read_b128 {q4('a', 4*i)}, v{QR} offset:{i*1024}")
    a("s_waitcnt lgkmcnt(0)")
    a("s_barrier")

def period(a, t, name):
    pq = 8 + 2 * t; pp = pq + 1
    mf = mf_qk(pq, Sreg, lambda g: q4('v', NEG + 4 * g)) + mf_pv(pp, PO)
    vp, vs = rd_ops(pq + 1, 0)
    kp, ks = rd_ops(pp + 1, 64)
    extra = []
    if pp + 1 == 70:
        extra = [Op(f"v_subrev_u32 v{VR+i}, 65536, v{VR+i}", lo=56, hi=63) for i in range(8)]
    spread(vp, 0, 20); spread(vs, 14, 40)
    d1 = spread(dma_ops(pq + 4), 2, 34)
    pw = spread(pw_ops(PO), 0, 12)
    ex, ad, cv = softmax_ops(33, 65, 92)
    spread(ex[:16], 34, 64); spread(ex[16:], 66, 112)
    for o in ad: o.hi = o.after[0].hi + 3
    for i, o in enumerate(cv): o.hi = 126
    pr = spread(pr_ops(), 64, 68)
    spread(kp, 66, 90); spread(ks, 84, 116)
    d2 = spread(dma_ops(pp + 4), 68, 110)
    ends = [endop(63, 16), endop(127, 16)]
    run(a, mf, [vp, vs, pw, d1, extra, pr, kp, ks, d2, ex, ad, cv, ends], name)

def gen_k2():
    a = Asm()
    a("s_cmp_ge_u32 s2, 256")
    a("s_cbranch_scc1 L_k2_end")
    a("s_load_dwordx4 s[40:43], s[0:1], 8")
    a("s_load_dwordx4 s[44:47], s[0:1], 24")
    a("s_load_dwordx2 s[48:49], s[0:1], 104")
    LN = T0 + 15; W_ = T0 + 14
    a(f"v_lshrrev_b32 v{W_}, 6, v0")
    a(f"v_and_b32 v{LN}, 63, v0")
    a(f"v_readfirstlane_b32 s32, v{W_}")
    a("s_and_b32 s50, s2, 7")
    a("s_lshl_b32 s50, s50, 1")
    a("s_bfe_u32 s51, s2, 0x10003")
    a("s_add_u32 s50, s50, s51")
    a("s_lshr_b32 s51, s2, 4")
    a("s_lshl_b32 s33, s32, 13")
    a("s_and_b32 s52, s32, 1")
    a("s_lshr_b32 s53, s32, 1")
    a(f"v_lshlrev_b32 v{LA}, 4, v{LN}")
    a("s_lshl_b32 s54, s51, 1")
    a("s_add_u32 s54, s54, s52")
    a(f"s_mul_i32 s54, s54, {4*14336}")
    a("s_lshl_b32 s55, s53, 10")
    a("s_add_u32 s54, s54, s55")
    a(f"v_lshrrev_b32 v{T0}, 4, v{LN}")
    a(f"v_lshlrev_b32 v{T0+1}, 5, v{T0}")
    a("s_lshl_b32 s55, s53, 7")
    a(f"s_add_u32 s55, s55, {MT}")
    a(f"v_and_b32 v{T0+2}, 15, v{LN}")
    a("s_xor_b32 s56, s52, s53")
    a("s_lshl_b32 s56, s56, 5")
    a(f"v_add_u32 v{T0+3}, s56, v{T0}")
    a("s_lshl_b32 s57, s53, 8")
    for j in range(8):
        a(f"v_lshl_add_u32 v{T0+4}, v{T0}, 1, {8*(j&1)}")
        a(f"v_xor_b32 v{T0+4}, v{T0+4}, v{T0+2}")
        a(f"v_lshl_add_u32 v{T0+4}, v{T0+4}, 4, s57")
        a(f"v_add_u32 v{T0+5}, {4*j}, v{T0+3}")
        a(f"v_lshl_add_u32 v{WD+j}, v{T0+5}, 13, v{T0+4}")
        a(f"v_lshl_add_u32 v{VD+j}, v{T0+5}, 9, v{T0+4}")
        if j & 3:
            a(f"v_subrev_u32 v{WD+j}, {1024*(j&3)}, v{WD+j}")
            a(f"v_subrev_u32 v{VD+j}, {1024*(j&3)}, v{VD+j}")
    a("s_waitcnt lgkmcnt(0)")
    srd(a, 24, 48, 49, 0x202000)
    a("s_lshl_b32 s58, s50, 9")
    a(f"s_sub_u32 s59, {448*8192}, s58")
    srd(a, 8, 44, 45, "s59", add="s58")
    HB = [PO, 48]
    MTR = [64, 72, 96, 104, 112, 120, None]
    MTR[6] = 64
    TM = [38, 39, 40, 41]
    MA = WOR
    a(f"v_mov_b32 v{MA}, v{T0+1}")
    a(f"v_mov_b32 v{MA+1}, v{LN}")
    LNK = MA + 1
    def xload(tau):
        for g in range(4):
            a(f"s_add_u32 s56, s54, {g*14336 + tau*2048}")
            a(f"buffer_load_dwordx4 {q4('a', 16*tau+4*g)}, v{LA}, s[24:27], s56 offen")
    def mload(tau):
        for h in range(2):
            a(f"buffer_load_dwordx4 {q4('v', MTR[tau]+4*h)}, v{MA}, s[24:27], s55 offen offset:{tau*256+16*h}")
    def emit(ops):
        for o in ops: a(o.text, o.tag)
    xload(0); mload(0); emit(dma_ops(0)); xload(1); mload(1); emit(dma_ops(1))
    for tau in (2, 3): xload(tau); mload(tau)
    emit(dma_ops(2))
    a("s_lshl_b32 s58, s50, 20")
    srd(a, 12, 40, 41, 1 << 20, add="s58")
    srd(a, 16, 42, 43, 1 << 20, add="s58")
    a(f"s_mul_i32 s58, s50, {256*896}")
    srd(a, 20, 46, 47, 256 * 896, add="s58")
    srd(a, 28, 48, 49, P_SZ, add=P1)
    a("s_mov_b32 s34, 0"); a("s_mov_b32 s35, 0"); a("s_mov_b32 s37, 0")
    a(f"v_lshrrev_b32 v{T0+4}, 5, v{LN}")
    a(f"v_and_b32 v{T0+5}, 31, v{LN}")
    a(f"v_lshl_add_u32 v{T0+6}, v{T0+4}, 9, s33")
    for j in range(8):
        a(f"v_add_u32 v{T0+7}, {2*j}, v{T0+4}")
        a(f"v_xor_b32 v{T0+7}, v{T0+7}, v{T0+5}")
        a(f"v_lshl_add_u32 v{KD+j}, v{T0+7}, 4, v{T0+6}")
        if j >= 4: a(f"v_add_u32 v{KD+j}, 4096, v{KD+j}")
    a("s_lshl_b32 s56, s53, 14")
    a("s_add_u32 s57, s56, 65536")
    a(f"v_xor_b32 v{T0+4}, v{T0}, v{T0+2}")
    a(f"v_lshlrev_b32 v{T0+4}, 4, v{T0+4}")
    a(f"v_lshl_add_u32 v{T0+5}, v{T0+2}, 9, s57")
    for j in range(4):
        a(f"v_xor_b32 v{T0+6}, {64*j}, v{T0+4}")
        a(f"v_add_u32 v{KR+j}, v{T0+6}, v{T0+5}")
    a(f"v_lshrrev_b32 v{T0+4}, 2, v{LN}")
    a(f"v_lshl_add_u32 v{T0+5}, v{T0+4}, 8, s56")
    a(f"v_and_b32 v{T0+6}, 1, v{LN}")
    a(f"v_lshl_add_u32 v{T0+5}, v{T0+6}, 4, v{T0+5}")
    a(f"v_bfe_u32 v{T0+6}, v{LN}, 1, 1")
    a(f"v_and_b32 v{T0+7}, 7, v{T0+4}")
    a(f"v_xor_b32 v{T0+6}, v{T0+6}, v{T0+7}")
    for s in range(4):
        a(f"v_xor_b32 v{T0+7}, {2*s}, v{T0+6}")
        a(f"v_lshl_add_u32 v{VR+s}, v{T0+7}, 5, v{T0+5}")
        a(f"v_add_u32 v{VR+4+s}, 65536, v{VR+s}")
    a("s_lshl_b32 s56, s32, 12")
    a(f"s_add_u32 s57, s56, {XB}")
    a(f"v_add_u32 v{PW}, s57, v{LA}")
    a(f"v_xor_b32 v{PR}, 8192, v{PW}")
    a("s_lshl_b32 s56, s52, 15")
    a("s_add_u32 s56, s56, 98304")
    a(f"v_add_u32 v{QR}, s56, v{LA}")
    a("s_lshl_b32 s56, s53, 14")
    a(f"v_add_u32 v{QW}, s56, v{QR}")
    a(f"s_mul_i32 s56, s52, {4*229376}")
    a("s_lshl_b32 s57, s53, 10")
    a("s_add_u32 s56, s56, s57")
    a(f"v_add_u32 v{PST}, s56, v{LA}")
    a("s_lshl_b32 s56, s51, 7")
    a("s_add_u32 s56, s56, s50")
    a("s_mul_i32 s60, s56, 14336")
    for g in range(1, 4): a(f"s_add_u32 s{60+g}, s60, {g*229376}")

    def mod_ops(tau):
        ops = []; last = []
        hb = HB[tau & 1]; mt = MTR[tau]
        for g in range(4):
            for r in range(4):
                h = hb + 4 * g + r; t = TM[2 * (r & 1)]
                ops.append(Op(f"v_accvgpr_read_b32 v{h}, a{16*tau+4*g+r}"))
                ops.append(Op(f"v_fma_mix_f32 v{t}, v{h}, v{mt+r}, v{mt+4+r} op_sel:[0,0,0] op_sel_hi:[1,1,1]"))
                ops.append(Op(f"v_fma_mix_f32 v{t+1}, v{h}, v{mt+r}, v{mt+4+r} op_sel:[1,1,1] op_sel_hi:[1,1,1]"))
                ops.append(Op(f"v_cvt_pk_bf16_f32 v{h}, v{t}, v{t+1}"))
            ops.append(Op(f"ds_write_b128 v{PW}, {q4('v', hb+4*g)} offset:{16384*(tau&1)+1024*g}", cost=2))
        return ops
    emit(mod_ops(0))
    for tau in (4, 5, 6): xload(tau); mload(tau)
    emit(dma_ops(3))
    a("s_waitcnt vmcnt(@T1) lgkmcnt(0)")
    a("s_barrier")
    p_, s_ = rd_ops(0, 0)
    emit(s_); emit(p_)
    a("s_waitcnt lgkmcnt(0)")
    a("s_barrier")
    for p in range(7):
        mf = mf_pv(p, HB[p & 1], first=(p == 0))
        rp, rs = rd_ops(p + 1, 0)
        spread(rp, 2, 28); spread(rs, 24, 56)
        pr = spread(pr_ops(16384 * (p & 1)), 0, 4)
        d = spread(dma_ops(p + 4), 0, 40)
        md = spread(mod_ops(p + 1), 0, 54) if p < 6 else []
        run(a, mf, [pr, rp, rs, d, md, [endop(63, f"@T{p+2}")]], f"qproj{p}")
    exchange(a)
    a(f"v_lshrrev_b32 v{T0+4}, 2, v{LNK}")
    a("s_lshl_b32 s56, s53, 14")
    a("s_add_u32 s56, s56, 65536")
    a(f"v_lshl_add_u32 v{T0+5}, v{T0+4}, 8, s56")
    a(f"v_and_b32 v{T0+6}, 3, v{LNK}")
    a(f"v_lshl_add_u32 v{T0+5}, v{T0+6}, 3, v{T0+5}")
    a(f"v_and_b32 v{T0+6}, 7, v{T0+4}")
    for t in range(8):
        a(f"v_xor_b32 v{T0+7}, {t}, v{T0+6}")
        a(f"v_lshl_add_u32 v{VR+t}, v{T0+7}, 5, v{T0+5}")
    a(f"v_lshrrev_b32 v{T0+5}, 3, v{LNK}")
    a(f"v_and_b32 v{T0+6}, 6, v{T0+5}")
    a(f"v_and_b32 v{T0+7}, 7, v{LNK}")
    a(f"v_xor_b32 v{T0+6}, v{T0+6}, v{T0+7}")
    a(f"s_mul_i32 s56, s32, {64*896}")
    a(f"v_mul_u32_u24 v{T0+5}, 896, v{T0+5}")
    a(f"v_lshl_add_u32 v{T0+5}, v{T0+6}, 4, v{T0+5}")
    a(f"v_add_u32 v{T0+5}, s56, v{T0+5}")
    for j in range(8):
        a(f"v_add_u32 v{WD+j}, {8*896*j - 1024*(j&3)}, v{T0+5}")
    a(f"v_bfe_u32 v{T0+5}, v{LNK}, 1, 1")
    a("s_lshl_b32 s56, s53, 1")
    a(f"v_add_u32 v{T0+5}, s56, v{T0+5}")
    a(f"v_bfe_u32 v{T0+6}, v{T0+4}, 1, 2")
    a(f"v_xor_b32 v{T0+5}, v{T0+5}, v{T0+6}")
    a(f"v_lshlrev_b32 v{T0+5}, 5, v{T0+5}")
    a(f"v_lshl_add_u32 v{T0+5}, v{T0+4}, 7, v{T0+5}")
    a(f"v_and_b32 v{T0+6}, 1, v{LNK}")
    a(f"v_lshl_add_u32 v{WOR}, v{T0+6}, 4, v{T0+5}")
    a(f"v_add_u32 v{WOR+1}, 65536, v{WOR}")
    for i in range(16): a(f"v_mov_b32 v{NEG+i}, 0")
    a("L_k2_att:")
    for j in range(4): a(f"v_subrev_u32 v{KR+j}, 65536, v{KR+j}")
    mf = mf_qk(7, Sreg, lambda g: q4('v', NEG + 4 * g))
    rp, rs = rd_ops(8, 0)
    spread(rp, 0, 24); spread(rs, 20, 54)
    d = spread(dma_ops(11), 0, 40)
    z = spread([Op(f"v_mov_b32 v{LS+g}, 0") for g in range(4)] + [Op(f"v_mov_b64 v[{OA+2*i}:{OA+2*i+1}], 0") for i in range(64)], 0, 60)
    run(a, mf, [rp, rs, d, z, [endop(63, 16)]], "qk0")
    a("s_cmp_lg_u32 s37, 0")
    a("s_cbranch_scc1 L_k2_havemax")
    M = T0; TT = T0 + 4
    for g in range(4):
        x = Sreg(0, g); y = Sreg(1, g)
        a(f"v_max3_f32 v{M+g}, v{x}, v{x+1}, v{x+2}")
        a(f"v_max3_f32 v{M+g}, v{M+g}, v{x+3}, v{y}")
        a(f"v_max3_f32 v{M+g}, v{M+g}, v{y+1}, v{y+2}")
        a(f"v_max_f32 v{M+g}, v{M+g}, v{y+3}")
    set_negm(a, M, TT)
    for sub in range(2):
        for g in range(4):
            for r in range(4): a(f"v_add_f32 v{Sreg(sub,g)+r}, v{Sreg(sub,g)+r}, v{NEG+4*g}")
    a("L_k2_havemax:")
    a("s_nop 7")
    ex, ad, cv = softmax_ops(0, 0, 0)
    emit(ex); emit(ad); emit(cv)
    a("s_mov_b32 s36, 14")
    a(".p2align 6")
    a("L_k2_loop:")
    i0 = len(a.L)
    period(a, 0, "per0"); period(a, 1, "per1")
    a("s_sub_u32 s36, s36, 1")
    a("s_cmp_lg_u32 s36, 0")
    a("s_cbranch_scc1 L_k2_loop")
    for t in (28, 29, 30): period(a, t, f"per{t}")
    mf = mf_pv(70, PO)
    rp, rs = rd_ops(71, 0)
    spread(rp, 14, 34); spread(rs, 30, 56)
    d = spread(dma_ops(74), 14, 50)
    tmp = Asm(); xlane(tmp, "v_add_f32", LS, T0)
    xl = [Op(i.text, hi=10) for i in tmp.L]
    pw = pw_ops(PO)
    for o in pw: o.hi = 4
    lw = Op(f"ds_write_b128 v{PW}, {q4('v', LS)} offset:16384", cost=2, hi=11)
    mid = Op("s_waitcnt lgkmcnt(0)\ns_barrier", cost=2, lo=13, hi=13)
    pr = pr_ops()
    LR = T0
    lr = [Op(f"ds_read_b128 {q4('v', S0+4*w)}, v{LA} offset:{4096*w}") for w in range(4)]
    lr.append(Op(f"ds_read_b128 {q4('v', S0+16)}, v{PR} offset:16384"))
    for o in pr + lr: o.lo = 14; o.hi = 18
    ck = []
    for r in range(1, 16): ck.append(Op(f"v_add_f32 v{S0}, v{S0}, v{S0+r}"))
    for g in range(4): ck.append(Op(f"v_add_f32 v{LS+g}, v{LS+g}, v{S0+16+g}"))
    for g in range(4): ck.append(Op(f"v_rcp_f32 v{LS+g}, v{LS+g}", cost=2))
    ck.append(Op(f"v_cmp_nlt_f32 vcc, v{S0}, v{S0+20}"))
    spread(ck, 26, 58)
    pre = [Op(f"v_add_u32 v{LA}, {XB+16384}, v{LA}", hi=8), Op(f"v_mov_b32 v{S0+20}, {hx(2.0**60)}", hi=8)]
    run(a, mf, [pw, xl + [lw], pre, pr + lr, rp, rs, d, ck, [mid, endop(63, 16)]], "pv31")
    a(f"v_subrev_u32 v{LA}, {XB+16384}, v{LA}")
    a("s_cmp_lg_u32 s37, 0")
    a("s_cbranch_scc1 L_k2_ok")
    a("s_cbranch_vccnz L_k2_fallback")
    a("L_k2_ok:")
    exchange(a)
    def oacc(p): return lambda sub, g: OA + 32 * (p & 1) + 4 * (sub * 4 + g)
    def epi(p):
        ops = []
        ac = oacc(p)
        for g in range(4):
            x = ac(0, g); y = ac(1, g)
            for r in range(4): ops.append(Op(f"v_mul_f32 v{x+r}, v{x+r}, v{LS+g}"))
            ops.append(Op(f"v_cvt_pk_bf16_f32 v{x}, v{x}, v{x+1}")); ops.append(Op(f"v_cvt_pk_bf16_f32 v{x+1}, v{x+2}, v{x+3}"))
            for r in range(4): ops.append(Op(f"v_mul_f32 v{y+r}, v{y+r}, v{LS+g}"))
            ops.append(Op(f"v_cvt_pk_bf16_f32 v{x+2}, v{y}, v{y+1}")); ops.append(Op(f"v_cvt_pk_bf16_f32 v{x+3}, v{y+2}, v{y+3}"))
            ops.append(Op(f"buffer_store_dwordx4 {q4('v', x)}, v{PST}, s[28:31], s{60+g} offen", cost=2))
        ops.append(Op(f"v_add_u32 v{PST}, 2048, v{PST}"))
        return ops
    for p in range(71, 78):
        mf = mf_qk(p, oacc(p), lambda g: 0)
        st = []
        if p < 77:
            rp, rs = rd_ops(p + 1, 0)
            st += [spread(rp, 0, 24), spread(rs, 20, 54)]
        if p + 4 <= 77: st.append(spread(dma_ops(p + 4), 0, 40))
        if p > 71: st.append(spread(epi(p - 1), 4, 60))
        if p <= 75: st.append([endop(63, f"@T{p+2}")])
        elif p == 76: st.append([endop(63, None, bar=False)])
        else: st.append([])
        run(a, mf, st, f"oproj{p}")
    emit(epi(77))
    a("s_endpgm")
    a("L_k2_fallback:")
    a("s_waitcnt vmcnt(0) lgkmcnt(0)")
    a("s_barrier")
    a("s_mov_b32 s37, 1")
    a("s_mov_b32 s34, 0"); a("s_mov_b32 s35, 0"); a("s_mov_b32 s36, 32")
    for i in range(8): a(f"v_add_u32 v{VR+i}, 65536, v{VR+i}")
    for g in range(4): a(f"v_mov_b32 v{M+g}, 0xff800000")
    a("L_k2_maxloop:")
    emit(dma_ops(8))
    a("s_waitcnt vmcnt(0)")
    a("s_barrier")
    rp, rs = rd_ops(8, 0)
    emit(rs); emit(rp)
    a("s_waitcnt lgkmcnt(0)")
    a("s_barrier")
    for m in mf_qk(8, Sreg, lambda g: 0): a(m)
    for g in range(4):
        x = Sreg(0, g); y = Sreg(1, g)
        a(f"v_max3_f32 v{M+g}, v{M+g}, v{x}, v{x+1}")
        a(f"v_max3_f32 v{M+g}, v{M+g}, v{x+2}, v{x+3}")
        a(f"v_max3_f32 v{M+g}, v{M+g}, v{y}, v{y+1}")
        a(f"v_max3_f32 v{M+g}, v{M+g}, v{y+2}, v{y+3}")
    a("s_sub_u32 s36, s36, 1")
    a("s_cmp_lg_u32 s36, 0")
    a("s_cbranch_scc1 L_k2_maxloop")
    set_negm(a, M, TT)
    a("s_mov_b32 s34, 0")
    for n in (7, 8, 9, 10): emit(dma_ops(n))
    for j in range(4): a(f"v_add_u32 v{KR+j}, 65536, v{KR+j}")
    a("s_waitcnt vmcnt(0) lgkmcnt(0)")
    a("s_barrier")
    rp, rs = rd_ops(7, 0)
    emit(rs); emit(rp)
    a("s_waitcnt lgkmcnt(0)")
    a("s_barrier")
    a("s_branch L_k2_att")
    a("L_k2_end:")
    a("s_endpgm")
    finalize(a)
    L = a.L
    b = next(i for i, x in enumerate(L) if x.text == 'L_k2_loop:')
    e = next(i for i, x in enumerate(L) if x.text == 's_cbranch_scc1 L_k2_loop')
    body = L[b:e + 1]
    pr = check_hazards(body + body, 'loop') + check_counters(body + body, 'loop')
    assert not pr, pr[:5]
    return a
```

```python
from asmlib import *
from layout import *
LOG2E = math.log2(math.e)
SLOT = 28800
UPOFF = 14464

def gen_k4(LA=6):
    a = Asm()
    a("s_cmp_ge_u32 s2, 256")
    a("s_cbranch_scc1 L_k4_end")
    a("s_load_dwordx4 s[4:7], s[0:1], 48")
    a("s_load_dwordx2 s[8:9], s[0:1], 64")
    a("s_load_dwordx2 s[10:11], s[0:1], 104")
    a("v_lshrrev_b32 v1, 6, v0")
    a("v_and_b32 v0, 63, v0")
    a("v_readfirstlane_b32 s32, v1")
    a("s_and_b32 s33, s2, 7")
    a("s_lshl_b32 s33, s33, 1")
    a("s_bfe_u32 s34, s2, 0x10003")
    a("s_add_u32 s33, s33, s34")
    a("s_lshr_b32 s34, s2, 4")
    a("s_lshl_b32 s34, s34, 2")
    a("s_add_u32 s34, s34, s32")
    a("s_mul_i32 s35, s34, 28672")
    a("v_lshlrev_b32 v2, 4, v0")
    a("s_waitcnt lgkmcnt(0)")
    srd(a, 20, 10, 11, X_SZ, add=H2)
    a("s_cmp_lt_u32 s32, 2")
    a("s_cselect_b32 s36, s4, s6")
    a("s_cselect_b32 s37, s5, s7")
    a("s_mul_i32 s38, s33, 224")
    a(f"s_sub_u32 s39, {448*3584}, s38")
    srd(a, 12, 36, 37, "s39", add="s38")
    a(f"s_mul_i32 s38, s33, {112*896}")
    a(f"s_sub_u32 s39, {1792*896}, s38")
    srd(a, 16, 8, 9, "s39", add="s38")
    a("s_and_b32 s40, s32, 1")
    a(f"s_mul_i32 s41, s40, {32*3584}")
    for i in range(7):
        a(f"v_add_u32 v3, {64*i}, v0")
        a("v_mul_u32_u24 v4, 4682, v3")
        a("v_lshrrev_b32 v4, 16, v4")
        a("v_mul_u32_u24 v5, 14, v4")
        a("v_sub_u32 v5, v3, v5")
        a("v_mul_u32_u24 v4, 3584, v4")
        a("v_lshl_add_u32 v4, v5, 4, v4")
        a(f"v_subrev_u32 v4, {1024*(i&3)}, v4")
        a(f"v_add_u32 v{8+i}, s41, v4")
    a("s_lshr_b32 s42, s32, 1")
    a(f"s_mul_i32 s42, s42, {UPOFF}")
    a("s_mul_i32 s43, s40, 7168")
    a("s_add_u32 s42, s42, s43")
    a("s_mul_i32 s43, s32, 7168")
    def dma(pos):
        ops = []
        sl = (pos % 5) * SLOT
        g = pos < 7
        so = pos * 64 * 3584 if g else (pos - 7) * 28672
        ops.append(Op(f"s_mov_b32 s44, {so}\ns_add_u32 m0, s{42 if g else 43}, {sl}", cost=2))
        for i in range(7):
            if i == 4: ops.append(Op(f"s_add_u32 m0, s{42 if g else 43}, {sl+4096}"))
            ops.append(Op(f"buffer_load_dwordx4 v{(8 if g else 16)+i}, s[{12 if g else 16}:{15 if g else 19}], s44 offen offset:{1024*(i&3)} lds",
                          cost=2, tag=f"T{pos}"))
        return ops
    def bload(sig):
        if sig % 4 == 0 and sig: a("s_add_u32 s35, s35, 4096")
        a(f"buffer_load_dwordx4 a[{4*sig}:{4*sig+3}], v2, s[20:23], s35 offen offset:{1024*(sig&3)}")
    for pos in range(5):
        for sig in range(4 * pos, 4 * pos + 4): bload(sig)
        for o in dma(pos): a(o.text, o.tag)
    for sig in range(20, 28): bload(sig)
    for i in range(7):
        a(f"v_add_u32 v3, {64*i}, v0")
        a("v_mul_u32_u24 v4, 1171, v3")
        a("v_bfe_u32 v4, v4, 17, 1")
        a("v_lshlrev_b32 v4, 6, v4")
        a("v_xor_b32 v4, v4, v2")
        a(f"v_add_u32 v4, s43, v4")
        a(f"v_add_u32 v{16+i}, {4096 if i >= 4 else 0}, v4")
    a("v_bfe_u32 v3, v0, 4, 1")
    a("v_lshrrev_b32 v4, 5, v0")
    a("v_bfe_u32 v5, v0, 2, 2")
    a("v_and_b32 v6, 3, v0")
    a("v_lshl_add_u32 v7, v4, 3, v5")
    a("v_mul_u32_u24 v7, 224, v7")
    a(f"v_mul_u32_u24 v23, {UPOFF}, v3")
    a("v_add_u32 v7, v7, v23")
    a("v_lshl_add_u32 v24, v6, 3, v7")
    a(f"v_add_u32 v25, {2*SLOT}, v24")
    a(f"v_add_u32 v26, {4*SLOT}, v24")
    a("v_lshl_add_u32 v7, v4, 2, v5")
    a("v_mul_u32_u24 v7, 896, v7")
    a("v_lshl_add_u32 v7, v3, 5, v7")
    a("v_and_b32 v23, 1, v6")
    a("v_lshl_add_u32 v7, v23, 4, v7")
    a("v_lshrrev_b32 v23, 1, v6")
    a("v_lshl_add_u32 v7, v23, 3, v7")
    a("v_lshrrev_b32 v23, 1, v5")
    a("v_lshl_add_u32 v27, v23, 6, v7")
    a("v_xor_b32 v23, 1, v23")
    a("v_lshl_add_u32 v28, v23, 6, v7")
    for k in (1, 2):
        a(f"v_add_u32 v{27+2*k}, {2*SLOT*k}, v27")
        a(f"v_add_u32 v{28+2*k}, {2*SLOT*k}, v28")
    srd(a, 24, 10, 11, P_SZ, add=P2)
    a("s_lshl_b32 s35, s34, 4")
    a("s_add_u32 s35, s35, s33")
    a("s_mul_i32 s35, s35, 28672")
    a(f"v_mov_b32 v33, {hx(-2*LOG2E*0.7978845608028654*0.044715)}")
    a(f"v_mov_b32 v34, {hx(-2*LOG2E*0.7978845608028654)}")

    FR = lambda i: 64 + 4 * (i % 8)
    GA = lambda ft: 128 + 16 * ft
    ACT = lambda k: 100 + 4 * k
    frags = []
    mf = []
    for pos in range(7):
        sl = pos % 5
        for sg in range(4):
            for ft in range(7):
                i = len(frags); f = FR(i)
                imm = (sl & 1) * SLOT + sg * 3584 + ft * 32
                frags.append((pos, [f"ds_read_b64_tr_b16 v[{f+2*h}:{f+2*h+1}], v{24+sl//2} offset:{imm+h*896}" for h in range(2)]))
                d = f"v[{GA(ft)}:{GA(ft)+15}]"
                sig = 4 * pos + sg
                mf.append(f"v_mfma_f32_32x32x16_bf16 {d}, v[{f}:{f+3}], a[{4*sig}:{4*sig+3}], {d if sig else 0}")
    for k in range(7):
        pos = 7 + k // 2; sl = pos % 5
        for nt in range(14):
            i = len(frags); f = FR(i)
            imm = (sl & 1) * SLOT + (k & 1) * 14336 + (nt >> 1) * 128
            frags.append((pos, [f"ds_read_b64_tr_b16 v[{f+2*h}:{f+2*h+1}], v{27+2*(sl//2)+(nt&1)} offset:{imm+h*7168}" for h in range(2)]))
            d = f"a[{16*nt}:{16*nt+15}]"
            mf.append(f"v_mfma_f32_32x32x16_bf16 {d}, v[{f}:{f+3}], v[{ACT(k)}:{ACT(k)+3}], {d if k else 0}")
    n = len(mf)
    rd = []; dm = []
    def rdops(i, lo):
        pos = frags[i][0]
        if i == 0 or frags[i - 1][0] != pos:
            b = Op(f"s_waitcnt vmcnt(@T{pos})\ns_barrier", cost=2, lo=lo, hi=lo)
            rd.append(b)
            if pos >= 2 and pos + 3 <= 10:
                for j, o in enumerate(dma(pos + 3)):
                    o.after = [b]; o.lo = lo + 1 + 2 * j; o.hi = lo + 20; dm.append(o)
        for t in frags[i][1]:
            rd.append(Op(t, lo=lo, hi=lo))
    for i in range(LA): rdops(i, -1)
    for o in rd: a(o.text, o.tag); o.gap = -1
    rd = []
    for i in range(LA, n): rdops(i, i - LA)
    def gelu(k, lo, hi):
        ops = []
        g0 = GA(k)
        for r in range(8):
            g = g0 + r; u = g0 + 8 + r; t = 36 + (r & 3)
            ops += [Op(f"v_mul_f32 v{t}, v{g}, v{g}"), Op(f"v_fma_f32 v{t}, v{t}, v33, v34"), Op(f"v_mul_f32 v{t}, v{t}, v{g}"),
                    Op(f"v_exp_f32 v{t}, v{t}", cost=2), Op(f"v_mul_f32 v{g}, v{g}, v{u}"), Op(f"v_add_f32 v{t}, 1.0, v{t}"),
                    Op(f"v_rcp_f32 v{t}, v{t}", cost=2)]
            if r & 1:
                t2 = 36 + ((r - 1) & 3)
                ops += [Op(f"v_mul_f32 v{g-1}, v{g-1}, v{t2}"), Op(f"v_mul_f32 v{g}, v{g}, v{t}"),
                        Op(f"v_cvt_pk_bf16_f32 v{ACT(k)+r//2}, v{g-1}, v{g}")]
        for o in ops: o.lo = lo; o.hi = hi
        return ops
    ge = []
    for k in range(7):
        ge += gelu(k, 189 + 3 + k, 196 + 14 * k - 1)
    ep = []
    for nt in range(14):
        lo = 196 + 84 + nt + 3
        for m1 in range(2):
            q = 40 + 8 * ((2 * nt + m1) % 3)
            for r in range(8):
                ep.append(Op(f"v_accvgpr_read_b32 v{q+r}, a{16*nt+8*m1+r}", lo=lo))
            for p in range(4):
                ep.append(Op(f"v_cvt_pk_bf16_f32 v{q+p}, v{q+2*p}, v{q+2*p+1}", lo=lo))
            u = 2 * nt + m1
            pre = "s_add_u32 s35, s35, 4096\n" if (u % 4 == 0 and u) else ""
            ep.append(Op(pre + f"buffer_store_dwordx4 v[{q}:{q+3}], v2, s[24:27], s35 offen offset:{1024*(u&3)}", cost=2, lo=lo))
    gaps, left = schedule(n, [rd, dm, ge, ep], budget=5)
    emit_phase(a, mf, gaps)
    a("L_k4_end:")
    a("s_endpgm")
    return finalize(a)
```

```python
import math
XN = 0; MT = 0x200000; MV = 0x201000; X1 = 0x300000; H2 = 0x500000; P1 = 0x800000; P2 = 0x2400000
XN_SZ = 128 * 14 * 1024; X_SZ = 2048 * 896; P_SZ = 0x1C00000
CSC = math.log2(math.e) / 16.0
import struct
def f2u(x): return struct.unpack('<I', struct.pack('<f', x))[0]
def hx(x): return "0x%08x" % f2u(x)

def srd(a, d, lo, hi, size, add=None):
    if add is None:
        a(f"s_mov_b32 s{d}, s{lo}"); a(f"s_mov_b32 s{d+1}, s{hi}")
    else:
        a(f"s_add_u32 s{d}, s{lo}, {add}"); a(f"s_addc_u32 s{d+1}, s{hi}, 0")
    a(f"s_mov_b32 s{d+2}, {size}")
    a(f"s_mov_b32 s{d+3}, 0x20000")
```

```python
from asmlib import *
from layout import *
LOG2E = math.log2(math.e)

def gen_k1():
    a = Asm()
    a("s_cmp_ge_u32 s2, 212")
    a("s_cbranch_scc1 L_k1_end")
    a("s_load_dwordx2 s[4:5], s[0:1], 72")
    a("s_load_dwordx2 s[6:7], s[0:1], 80")
    a("s_load_dwordx2 s[8:9], s[0:1], 104")
    a("s_load_dwordx2 s[10:11], s[0:1], 0")
    a("s_cmp_ge_u32 s2, 84")
    a("s_waitcnt lgkmcnt(0)")
    a("s_cbranch_scc1 L_k1_ln")
    srd(a, 12, 4, 5, 896)
    srd(a, 16, 6, 7, 448 * 5376)
    srd(a, 20, 8, 9, 0x3000, add=MT)
    a("v_lshrrev_b32 v1, 2, v0")
    a("v_and_b32 v2, 3, v0")
    a("v_lshlrev_b32 v3, 1, v1")
    a("v_mul_u32_u24 v4, 5376, v1")
    a("v_lshl_add_u32 v4, v2, 4, v4")
    a("s_lshl_b32 s24, s2, 6")
    for i in range(7):
        a(f"buffer_load_dwordx4 v[{20+4*i}:{23+4*i}], v4, s[16:19], s24 offen")
        if i < 6: a(f"s_add_u32 s24, s24, {64*5376}")
    for i in range(7):
        a(f"buffer_load_ushort v{10+i}, v3, s[12:15], 0 offen offset:{128*i}")
    a("v_lshrrev_b32 v5, 4, v0")
    a("v_lshlrev_b32 v5, 7, v5")
    a("v_lshl_add_u32 v5, v2, 5, v5")
    a("v_and_b32 v6, 31, v0")
    a("v_lshlrev_b32 v7, 2, v6")
    for i in range(7):
        r = 10 + i
        a(f"v_lshlrev_b32 v{r}, 16, v{r}")
        a(f"v_mul_f32 v8, {hx(-LOG2E)}, v{r}")
        a("v_exp_f32 v8, v8")
        a("v_add_f32 v8, 1.0, v8")
        a("v_rcp_f32 v8, v8")
        a(f"v_mul_f32 v{r}, v{r}, v8")
        a(f"v_cvt_pk_bf16_f32 v{r}, v{r}, v{r}")
        a(f"v_lshlrev_b32 v{r}, 16, v{r}")
    for i in range(7):
        for p in range(4):
            w = 20 + 4 * i + p
            a(f"v_lshlrev_b32 v8, 16, v{w}")
            a(f"v_and_b32 v9, 0xffff0000, v{w}")
            if i == 0:
                a(f"v_mul_f32 v{50+2*p}, v8, v10"); a(f"v_mul_f32 v{51+2*p}, v9, v10")
            else:
                a(f"v_fmac_f32 v{50+2*p}, v8, v{10+i}"); a(f"v_fmac_f32 v{51+2*p}, v9, v{10+i}")
    for ror in (4, 8):
        for p in range(8):
            a(f"v_add_f32_dpp v{50+p}, v{50+p}, v{50+p} row_ror:{ror} row_mask:0xf bank_mask:0xf")
    a("ds_write_b128 v5, v[50:53]")
    a("ds_write_b128 v5, v[54:57] offset:16")
    a("v_readfirstlane_b32 s25, v0")
    a("s_waitcnt lgkmcnt(0)")
    a("s_barrier")
    a("s_cmp_lg_u32 s25, 0")
    a("s_cbranch_scc1 L_k1_end")
    for k in range(16):
        a(f"ds_read_b32 v{20+k}, v7 offset:{128*k}")
    a("s_mul_i32 s26, s2, 4682")
    a("s_lshr_b32 s26, s26, 16")
    a("s_mul_i32 s27, s26, 14")
    a("s_sub_u32 s27, s2, s27")
    for k in range(8):
        a(f"v_add_f32 v{20+k}, v{20+k}, v{28+k}")
    for k in range(4):
        a(f"v_add_f32 v{20+k}, v{20+k}, v{24+k}")
    a("v_add_f32 v20, v20, v22"); a("v_add_f32 v21, v21, v23"); a("v_add_f32 v20, v20, v21")
    a("v_cvt_pk_bf16_f32 v20, v20, v20")
    a("v_lshlrev_b32 v20, 16, v20")
    a("s_cmp_eq_u32 s26, 1")
    a("s_cbranch_scc1 L_k1_plus1")
    a("s_cmp_eq_u32 s26, 4")
    a("s_cbranch_scc0 L_k1_noplus")
    a("L_k1_plus1:")
    a("v_add_f32 v20, 1.0, v20")
    a("v_cvt_pk_bf16_f32 v20, v20, v20")
    a("v_lshlrev_b32 v20, 16, v20")
    a("L_k1_noplus:")
    a("s_cmp_ge_u32 s26, 2")
    a("s_cbranch_scc1 L_k1_mv")
    a(f"v_mul_f32 v20, {hx(CSC)}, v20")
    a("v_cvt_f16_f32 v20, v20")
    a("v_bfe_u32 v8, v6, 2, 2")
    a("v_lshlrev_b32 v8, 5, v8")
    a("v_lshrrev_b32 v9, 4, v6")
    a("v_lshl_add_u32 v8, v9, 3, v8")
    a("v_and_b32 v9, 3, v6")
    a("v_lshl_add_u32 v8, v9, 1, v8")
    a("s_lshl_b32 s27, s27, 7")
    a("s_xor_b32 s26, s26, 1")
    a("s_lshl_b32 s26, s26, 4")
    a("s_add_u32 s27, s27, s26")
    a("buffer_store_short v20, v8, s[20:23], s27 offen")
    a("s_endpgm")
    a("L_k1_mv:")
    a("s_sub_u32 s26, s26, 2")
    a("s_lshl_b32 s26, s26, 11")
    a("s_lshl_b32 s27, s27, 7")
    a("s_add_u32 s27, s27, s26")
    a("s_add_u32 s27, s27, 0x1000")
    a("buffer_store_dword v20, v7, s[20:23], s27 offen")
    a("s_endpgm")
    a("L_k1_ln:")
    srd(a, 12, 10, 11, X_SZ)
    srd(a, 16, 8, 9, XN_SZ)
    a("s_sub_u32 s24, s2, 84")
    a("s_mul_i32 s24, s24, 14336")
    a("v_lshrrev_b32 v1, 4, v0")
    a("v_and_b32 v2, 15, v0")
    a("v_mul_u32_u24 v3, 896, v1")
    a("v_lshl_add_u32 v3, v2, 3, v3")
    for i in range(7):
        a(f"buffer_load_dwordx2 v[{10+2*i}:{11+2*i}], v3, s[12:15], s24 offen offset:{128*i}")
    a("v_lshrrev_b32 v4, 3, v2")
    a("v_lshlrev_b32 v4, 10, v4")
    a("v_and_b32 v5, 3, v2")
    a("v_lshl_add_u32 v4, v5, 8, v4")
    a("v_lshl_add_u32 v4, v1, 4, v4")
    a("v_bfe_u32 v5, v2, 2, 1")
    a("v_lshl_add_u32 v4, v5, 3, v4")
    for r in range(14):
        a(f"v_lshlrev_b32 v{24+2*r}, 16, v{10+r}")
        a(f"v_and_b32 v{25+2*r}, 0xffff0000, v{10+r}")
    a("v_add_f32 v6, v24, v25"); a("v_add_f32 v7, v26, v27")
    for r in range(4, 28, 2):
        a(f"v_add_f32 v6, v6, v{24+r}"); a(f"v_add_f32 v7, v7, v{25+r}")
    a("v_add_f32 v6, v6, v7")
    for ror in (8, 4, 2, 1):
        a(f"v_add_f32_dpp v6, v6, v6 row_ror:{ror} row_mask:0xf bank_mask:0xf")
    a(f"v_mul_f32 v6, {hx(-1.0/448)}, v6")
    for r in range(28):
        a(f"v_add_f32 v{24+r}, v{24+r}, v6")
    a("v_mul_f32 v7, v24, v24"); a("v_mul_f32 v8, v25, v25")
    for r in range(2, 28, 2):
        a(f"v_fmac_f32 v7, v{24+r}, v{24+r}"); a(f"v_fmac_f32 v8, v{25+r}, v{25+r}")
    a("v_add_f32 v7, v7, v8")
    for ror in (8, 4, 2, 1):
        a(f"v_add_f32_dpp v7, v7, v7 row_ror:{ror} row_mask:0xf bank_mask:0xf")
    a(f"v_mov_b32 v8, {hx(1e-5)}")
    a(f"v_fmac_f32 v8, {hx(1.0/448)}, v7")
    a("v_rsq_f32 v8, v8")
    for r in range(28):
        a(f"v_mul_f32 v{24+r}, v{24+r}, v8")
    for r in range(14):
        a(f"v_cvt_pk_f16_f32 v{10+r}, v{24+2*r}, v{25+2*r}")
    for i in range(7):
        a(f"buffer_store_dwordx2 v[{10+2*i}:{11+2*i}], v4, s[16:19], s24 offen")
        if i < 6: a("s_add_u32 s24, s24, 2048")
    a("L_k1_end:")
    a("s_endpgm")
    return finalize(a)

def sum_partials(a, src, acc, t):
    for h in range(16):
        for p in range(4):
            w = src + 4 * h + p
            if h == 0:
                a(f"v_lshlrev_b32 v{acc+2*p}, 16, v{w}"); a(f"v_and_b32 v{acc+2*p+1}, 0xffff0000, v{w}")
            else:
                tt = t + 2 * (p & 1)
                a(f"v_lshlrev_b32 v{tt}, 16, v{w}"); a(f"v_and_b32 v{tt+1}, 0xffff0000, v{w}")
                a(f"v_pk_add_f32 v[{acc+2*p}:{acc+2*p+1}], v[{acc+2*p}:{acc+2*p+1}], v[{tt}:{tt+1}]")

def gen_k3():
    a = Asm()
    a("s_cmp_ge_u32 s2, 256")
    a("s_cbranch_scc1 L_k3_end")
    a("s_load_dwordx2 s[4:5], s[0:1], 0")
    a("s_load_dwordx2 s[6:7], s[0:1], 104")
    a("v_and_b32 v1, 7, v0")
    a("v_lshrrev_b32 v2, 3, v0")
    a("s_and_b32 s24, s2, 1")
    a("s_lshl_b32 s24, s24, 7")
    a("s_lshr_b32 s25, s2, 1")
    a("s_mul_i32 s25, s25, 229376")
    a("s_add_u32 s24, s24, s25")
    a("v_lshlrev_b32 v3, 8, v2")
    a("v_lshl_add_u32 v3, v1, 4, v3")
    a("v_mul_u32_u24 v4, 896, v1")
    a("v_lshl_add_u32 v4, v2, 4, v4")
    a("s_mul_i32 s26, s2, 7168")
    a("v_lshlrev_b32 v5, 5, v2")
    a("s_waitcnt lgkmcnt(0)")
    srd(a, 8, 6, 7, P_SZ, add=P1)
    for h in range(16):
        a(f"buffer_load_dwordx4 v[{16+4*h}:{19+4*h}], v3, s[8:11], s24 offen")
        if h < 15: a("s_add_u32 s24, s24, 14336")
    srd(a, 12, 4, 5, X_SZ)
    srd(a, 16, 6, 7, 8192, add=MV)
    a("buffer_load_dwordx4 v[80:83], v4, s[12:15], s26 offen")
    a("buffer_load_dwordx4 v[84:87], v5, s[16:19], 0 offen")
    a("buffer_load_dwordx4 v[88:91], v5, s[16:19], 0 offen offset:16")
    a("s_movk_i32 s27, 2048")
    a("buffer_load_dwordx4 v[92:95], v5, s[16:19], s27 offen")
    a("buffer_load_dwordx4 v[96:99], v5, s[16:19], s27 offen offset:16")
    a("buffer_load_dwordx4 v[100:103], v5, s[16:19], s27 offen offset:2048")
    a("buffer_load_dwordx4 v[104:107], v5, s[16:19], s27 offen offset:2064")
    srd(a, 20, 6, 7, X_SZ, add=X1)
    srd(a, 28, 6, 7, X_SZ, add=H2)
    a("v_lshrrev_b32 v6, 6, v0")
    a("v_lshlrev_b32 v7, 3, v1")
    a("v_lshl_add_u32 v6, v6, 6, v7")
    a("v_lshlrev_b32 v5, 9, v2")
    a("v_lshl_add_u32 v5, v1, 4, v5")
    a("s_lshr_b32 s27, s2, 2")
    a("s_mul_i32 s27, s27, 28672")
    a("s_and_b32 s25, s2, 3")
    a("s_lshl_b32 s25, s25, 7")
    a("s_add_u32 s27, s27, s25")
    sum_partials(a, 16, 108, 8)
    for p in range(4):
        a(f"v_lshlrev_b32 v8, 16, v{80+p}"); a(f"v_and_b32 v9, 0xffff0000, v{80+p}")
        a(f"v_fmac_f32 v8, v{84+2*p}, v{108+2*p}"); a(f"v_fmac_f32 v9, v{85+2*p}, v{109+2*p}")
        a(f"v_cvt_pk_bf16_f32 v{80+p}, v8, v9")
    a("buffer_store_dwordx4 v[80:83], v4, s[20:23], s26 offen")
    for p in range(4):
        a(f"v_lshlrev_b32 v{108+2*p}, 16, v{80+p}"); a(f"v_and_b32 v{109+2*p}, 0xffff0000, v{80+p}")
    a("v_add_f32 v8, v108, v109"); a("v_mul_f32 v9, v108, v108"); a("v_fmac_f32 v9, v109, v109")
    for r in range(2, 8):
        a(f"v_add_f32 v8, v8, v{108+r}"); a(f"v_fmac_f32 v9, v{108+r}, v{108+r}")
    for r in (8, 9):
        a(f"v_add_f32_dpp v{r}, v{r}, v{r} row_ror:8 row_mask:0xf bank_mask:0xf")
    for sw in ("v_permlane16_swap_b32", "v_permlane32_swap_b32"):
        a("v_mov_b32 v10, v8"); a("v_mov_b32 v11, v9")
        a(f"{sw} v8, v10"); a(f"{sw} v9, v11")
        a("v_add_f32 v8, v8, v10"); a("v_add_f32 v9, v9, v11")
    a("ds_write_b64 v6, v[8:9]")
    a("s_waitcnt lgkmcnt(0)")
    a("s_barrier")
    for w in range(7):
        a(f"ds_read_b64 v[{16+2*w}:{17+2*w}], v7 offset:{64*w}")
    for w in range(1, 7):
        a(f"v_pk_add_f32 v[16:17], v[16:17], v[{16+2*w}:{17+2*w}]")
    a(f"v_mul_f32 v16, {hx(1.0/448)}, v16")
    a(f"v_mul_f32 v17, {hx(1.0/448)}, v17")
    a("v_fma_f32 v17, -v16, v16, v17")
    a("v_max_f32 v17, 0, v17")
    a(f"v_add_f32 v17, {hx(1e-5)}, v17")
    a("v_rsq_f32 v17, v17")
    for r in range(8):
        a(f"v_sub_f32 v{108+r}, v{108+r}, v16")
    for r in range(8):
        a(f"v_mul_f32 v{100+r}, v{100+r}, v17")
    for r in range(8):
        a(f"v_fma_f32 v{108+r}, v{108+r}, v{100+r}, v{92+r}")
    for p in range(4):
        a(f"v_cvt_pk_bf16_f32 v{84+p}, v{108+2*p}, v{109+2*p}")
    a("buffer_store_dwordx4 v[84:87], v5, s[28:31], s27 offen")
    a("L_k3_end:")
    a("s_endpgm")
    return finalize(a)

def gen_k5():
    a = Asm()
    a("s_cmp_ge_u32 s2, 256")
    a("s_cbranch_scc1 L_k5_end")
    a("s_load_dwordx2 s[4:5], s[0:1], 88")
    a("s_load_dwordx2 s[6:7], s[0:1], 104")
    a("v_and_b32 v1, 7, v0")
    a("v_lshrrev_b32 v2, 3, v0")
    a("s_lshr_b32 s24, s2, 2")
    a(f"s_mul_i32 s24, s24, {16*28672}")
    a("s_and_b32 s25, s2, 3")
    a("s_lshl_b32 s25, s25, 7")
    a("s_add_u32 s24, s24, s25")
    a("v_lshlrev_b32 v3, 9, v2")
    a("v_lshl_add_u32 v3, v1, 4, v3")
    a("v_mul_u32_u24 v4, 896, v1")
    a("v_lshl_add_u32 v4, v2, 4, v4")
    a("s_mul_i32 s26, s2, 7168")
    a("v_lshlrev_b32 v5, 5, v2")
    a("s_waitcnt lgkmcnt(0)")
    srd(a, 8, 6, 7, P_SZ, add=P2)
    for h in range(16):
        a(f"buffer_load_dwordx4 v[{16+4*h}:{19+4*h}], v3, s[8:11], s24 offen")
        if h < 15: a("s_add_u32 s24, s24, 28672")
    srd(a, 12, 6, 7, X_SZ, add=X1)
    srd(a, 16, 6, 7, 2048, add=MV + 3 * 2048)
    a("buffer_load_dwordx4 v[80:83], v4, s[12:15], s26 offen")
    a("buffer_load_dwordx4 v[84:87], v5, s[16:19], 0 offen")
    a("buffer_load_dwordx4 v[88:91], v5, s[16:19], 0 offen offset:16")
    srd(a, 20, 4, 5, X_SZ)
    sum_partials(a, 16, 92, 8)
    for p in range(4):
        a(f"v_lshlrev_b32 v8, 16, v{80+p}"); a(f"v_and_b32 v9, 0xffff0000, v{80+p}")
        a(f"v_fmac_f32 v8, v{84+2*p}, v{92+2*p}"); a(f"v_fmac_f32 v9, v{85+2*p}, v{93+2*p}")
        a(f"v_cvt_pk_bf16_f32 v{80+p}, v8, v9")
    a("buffer_store_dwordx4 v[80:83], v4, s[20:23], s26 offen")
    a("L_k5_end:")
    a("s_endpgm")
    return finalize(a)
```

```python
import sys
sys.path.insert(0, 'gen')
from asmlib import *
import small, k2, k4
HDR = open('adaLN_cond__mha_block_cached__glu_gated_geglu__prompt.s.ref').read().split('; Override launch')[0]
def build(path, extra_launch=0):
    ks = [("k1_kernel", small.gen_k1(), 212, 256, 2048, 64, 64),
          ("k2_kernel", k2.gen_k2(), 256, 256, 163840, 512, 256),
          ("k3_kernel", small.gen_k3(), 256, 448, 512, 120, 120),
          ("k4_kernel", k4.gen_k4(), 256, 256, 144000, 512, 256),
          ("k5_kernel", small.gen_k5(), 256, 448, 0, 104, 104)]
    s = HDR
    for n, a, g, b, l, v, ac in ks:
        s += f"; @launch kernel={n} grid=({g},1,1) block=({b},1,1) lds={l}\n"
    s += '.amdgcn_target "amdgcn-amd-amdhsa--gfx950"\n.text\n'
    for n, a, *_ in ks: s += kernel_text(n, a)
    s += '.section .rodata,"a"\n'
    for n, a, g, b, l, v, ac in ks: s += kd_text(n, v, ac)
    open(path, 'w').write(s)
    for n, a, *_ in ks:
        print(n, len(a.L), 'nops', sum(1 for i in a.L if i.tag == 'autonop'), 'waits', sum(1 for i in a.L if i.tag == 'autowait'))
    print(k2.STATS)
if __name__ == '__main__':
    build(sys.argv[1] if len(sys.argv) > 1 else 'adaLN_cond__mha_block_cached__glu_gated_geglu__prompt.s')
```
